```python
import torch

def _softmax(x, axis=-1):
    return torch.softmax(x, dim=axis)
def _gelu(x):
    return torch.nn.functional.gelu(x, approximate="tanh")
def _silu(x):
    return torch.nn.functional.silu(x)
def _sigmoid(x):
    return torch.sigmoid(x)
def _layernorm(x, axis=-1, eps=1e-5):
    m = x.mean(dim=axis, keepdim=True)
    v = x.var(dim=axis, keepdim=True, unbiased=False)
    return (x - m) / torch.sqrt(v + eps)
def _scatter_add(tgt, idx, src, axis=0):
    return tgt.clone().index_add_(axis, idx, src)
def _segment_sum(src, seg, n):
    out = torch.zeros((n,) + src.shape[1:], dtype=src.dtype)
    return out.index_add_(0, seg, src)
def _pad(x, pw):
    flat = tuple(v for pair in reversed(pw) for v in pair)
    return torch.nn.functional.pad(x, flat)

kernel_name = 'recurrent_scan__sliding_block_cached__glu_gated_geglu__decode'

def setup_inputs():

    _w = (lambda a: (lambda t: t.to(torch.bfloat16) if t.is_floating_point() else t)(torch.as_tensor(a)))
    def _A_setup():
        B, Sq, D = 2, 1, 512
        Hq, Hkv, Sk, Dh = 32, 32, 4096, 128
        assert Hq % Hkv == 0, (Hq, Hkv)
        return {
            "x": _w((lambda *s: torch.randn(*s, dtype=torch.bfloat16) * 0.2)(B, Sq, D)),
            "k_cache": _w((lambda *s: torch.randn(*s, dtype=torch.bfloat16) * 1.6)(B, Hkv, Sk, Dh)),
            "v_cache": _w((lambda *s: torch.randn(*s, dtype=torch.bfloat16) * 1.6)(B, Hkv, Sk, Dh)),
            "wq": _w((lambda *s: torch.randn(*s, dtype=torch.bfloat16) * 1.6)(D, Hq * Dh) * (D ** -0.5)),
            "wo": _w((lambda *s: torch.randn(*s, dtype=torch.bfloat16) * 1.6)(Hq * Dh, D) * ((Hq * Dh) ** -0.5)),
        }
    _A_in = _A_setup()

    def _B_setup():
        B, S, Dm, Df = 2, 1, 512, 1376
        return {
            "x": _w((lambda *s: torch.randn(*s, dtype=torch.bfloat16) * 0.2)(B, S, Dm)),
            "w_gate": _w((lambda *s: torch.randn(*s, dtype=torch.bfloat16) * 0.8)(Dm, Df) * (Dm ** -0.5)),
            "w_up": _w((lambda *s: torch.randn(*s, dtype=torch.bfloat16) * 0.8)(Dm, Df) * (Dm ** -0.5)),
            "w_down": _w((lambda *s: torch.randn(*s, dtype=torch.bfloat16) * 0.8)(Df, Dm) * (Df ** -0.5)),
        }
    _B_in = _B_setup()

    return {
        "A_x": _A_in["x"],
        "A_k_cache": _A_in["k_cache"],
        "A_v_cache": _A_in["v_cache"],
        "A_wq": _A_in["wq"],
        "A_wo": _A_in["wo"],
        "B_x": _B_in["x"],
        "B_w_gate": _B_in["w_gate"],
        "B_w_up": _B_in["w_up"],
        "B_w_down": _B_in["w_down"],
    }

def reference(A_x, A_k_cache, A_v_cache, A_wq, A_wo, B_x, B_w_gate, B_w_up, B_w_down):
    def _A_ref(x, k_cache, v_cache, wq, wo):
        B, Sq, D = x.shape
        Hq, Dh = 32, 128
        Hkv, Sk = k_cache.shape[1], k_cache.shape[2]
        W = min(4096, max(256, Sk // 4))
        rep = Hq // Hkv
        q = (lambda x, *d: x.permute(*d))((x @ wq).reshape(B, Sq, Hq, Dh), 0, 2, 1, 3)
        k = (lambda x, n, axis: torch.repeat_interleave(x, n, dim=axis))(k_cache[:, :, Sk - W:, :], rep, axis=1)
        v = (lambda x, n, axis: torch.repeat_interleave(x, n, dim=axis))(v_cache[:, :, Sk - W:, :], rep, axis=1)
        scores = torch.einsum("bhqd,bhkd->bhqk", q, k) * (Dh ** -0.5)
        p = _softmax(scores, axis=-1)
        o = torch.einsum("bhqk,bhkd->bhqd", p, v)
        return (lambda x, *d: x.permute(*d))(o, 0, 2, 1, 3).reshape(B, Sq, Hq * Dh) @ wo

    def _B_ref(x, w_gate, w_up, w_down):
        g = torch.einsum("bsd,df->bsf", x, w_gate)
        u = torch.einsum("bsd,df->bsf", x, w_up)
        h = _gelu(g) * u
        return torch.einsum("bsf,fd->bsd", h, w_down)

    x = A_x
    xn = _layernorm(x, axis=-1)
    s = _A_ref(xn, A_k_cache, A_v_cache, A_wq, A_wo)
    g = _silu(_B_ref(xn, B_w_gate, B_w_up, B_w_down))
    return x + s * g
```

```python
import re
TRANS = ("v_exp_f32", "v_log_f32", "v_rcp_f32", "v_rsq_f32", "v_sqrt_f32", "v_sin_f32", "v_cos_f32")
def regs(tok):
    tok = tok.strip()
    tok = tok.lstrip("-")
    m = re.fullmatch(r"abs\((.*)\)", tok) or re.fullmatch(r"\|(.*)\|", tok)
    if m: tok = m.group(1)
    m = re.fullmatch(r"([vs])(\d+)", tok)
    if m: return {(m.group(1), int(m.group(2)))}
    m = re.fullmatch(r"([vs])\[(\d+):(\d+)\]", tok)
    if m: return {(m.group(1), i) for i in range(int(m.group(2)), int(m.group(3)) + 1)}
    if tok == "vcc": return {("s", 106), ("s", 107)}
    if tok == "exec": return {("s", 126), ("s", 127)}
    if tok == "m0": return {("s", 124)}
    return set()
def split_ops(rest):
    out, depth, cur = [], 0, ""
    for ch in rest:
        if ch == "[": depth += 1
        if ch == "]": depth -= 1
        if ch == "," and depth == 0:
            out.append(cur.strip()); cur = ""
        else: cur += ch
    out.append(cur.strip())
    if out and " " in out[-1]:
        out[-1] = out[-1].split(" ")[0]
    return out
class Ins:
    def __init__(s, text):
        s.text = text
        p = text.split(None, 1)
        s.op = p[0]; rest = p[1] if len(p) > 1 else ""
        s.ops = split_ops(rest) if rest else []
        op = s.op
        s.valu = op.startswith("v_"); s.mfma = op.startswith("v_mfma")
        s.dpp = "_dpp" in op; s.perml = op.startswith("v_permlane")
        s.trans = any(op.startswith(t) for t in TRANS)
        s.vmem = op.startswith(("global_", "buffer_", "flat_")); s.ds = op.startswith("ds_")
        s.store = (s.vmem and ("store" in op or "atomic" in op))
        s.rdlane = op.startswith(("v_readlane", "v_readfirstlane")); s.wrlane = op.startswith("v_writelane")
        R = [regs(o) for o in s.ops]
        s.w, s.r = set(), set()
        s.wide_data = set(); s.srcc = set(); s.ab = set(); s.lanesel = set()
        if s.valu:
            if s.perml: s.w = R[0] | R[1]; s.r = R[0] | R[1]
            elif s.mfma:
                s.w = R[0]; s.ab = R[1] | R[2]; s.srcc = R[3]; s.r = s.ab | s.srcc
            else:
                s.w = set(R[0]); k = 1
                if op.startswith(("v_add_co", "v_sub_co", "v_addc_co", "v_subb_co", "v_div_scale", "v_mad_u64")):
                    s.w |= R[1]; k = 2
                for x in R[k:]: s.r |= x
                if op.startswith(("v_fmac", "v_dot2c", "v_writelane")) or s.dpp: s.r |= R[0]
                if (s.rdlane or s.wrlane) and len(R) > 2: s.lanesel = R[2]
        elif s.vmem:
            lds = " lds" in text or "load_lds" in op
            if s.store:
                for x in R: s.r |= x
                d = R[0] if op.startswith("buffer_") else R[1]
                if len(d) >= 3: s.wide_data = d
                if "atomic" in op and " sc0" in text: s.w = R[0]
            elif lds:
                for x in R: s.r |= x
                s.r |= {("s", 124)}
            else:
                s.w = R[0]
                for x in R[1:]: s.r |= x
        elif s.ds:
            if "read" in op or "rtn" in op or "permute" in op or "swizzle" in op:
                s.w = R[0]
                for x in R[1:]: s.r |= x
            else:
                for x in R: s.r |= x
        elif op.startswith("s_") and R:
            if op.startswith(("s_cmp", "s_bitcmp", "s_cbranch", "s_branch", "s_waitcnt", "s_nop", "s_sleep", "s_setprio", "s_barrier")):
                for x in R: s.r |= x
            else:
                s.w = set(R[0])
                for x in R[1:]: s.r |= x
        s.states = 1
        if op == "s_nop": s.states = int(s.ops[0], 0) + 1
def need(p, c):
    n = 0
    vw = {x for x in p.w if x[0] == "v"}; sw = {x for x in p.w if x[0] == "s"}
    if p.valu and not p.mfma:
        if vw & c.r:
            if c.dpp or c.perml or c.mfma: n = max(n, 2)
            if c.rdlane: n = max(n, 1)
            if p.trans and c.valu and not c.trans: n = max(n, 1)
            if "sdwa" in p.op and c.valu: n = max(n, 1)
        if sw:
            if c.valu and sw & c.r: n = max(n, 2)
            if c.valu and ("cndmask" in c.op or "addc" in c.op or "subb" in c.op) and ("s", 106) in sw: n = max(n, 2)
            if sw & c.lanesel: n = max(n, 4)
            if c.vmem and sw & c.r: n = max(n, 5)
    if p.mfma:
        P = 8 if "32x32" in p.op else 4
        lat = {4: (8, 6, 3), 8: (12, 10, 7)}[P]
        if c.mfma:
            if vw & c.ab: n = max(n, lat[0])
            if vw & c.srcc and not (vw == c.srcc and p.op == c.op): n = max(n, lat[1])
            if vw & c.w and not (vw == c.srcc): n = max(n, lat[1])
        else:
            if (c.valu or c.vmem or c.ds) and vw & (c.r | c.w): n = max(n, lat[0])
            if c.valu and p.srcc & c.w: n = max(n, lat[2])
    if p.wide_data and (c.w & p.wide_data): n = max(n, 2 if c.valu else 1)
    if p.op.startswith("s_") and ("s", 124) in p.w and ("s", 124) in c.r and (c.vmem or c.ds): n = max(n, 1)
    return n
class Gen:
    def __init__(s):
        s.lines = []; s.hist = []; s.vm = []; s.nops = 0
    def label(s, name):
        s.lines.append(name + ":")
    def flush_hist(s):
        s.hist = []
    def raw(s, t): s.lines.append("    " + t)
    def __call__(s, text, tag=None):
        for t in text.split("\n"):
            t = t.split(";")[0].strip()
            if not t: continue
            c = Ins(t)
            dist = 0; pad = 0
            for p in reversed(s.hist):
                pad = max(pad, need(p, c) - dist)
                dist += p.states
                if dist > 20: break
            while pad > 0:
                k = min(pad, 16)
                s.lines.append(f"    s_nop {k-1}"); s.hist.append(Ins(f"s_nop {k-1}")); pad -= k; s.nops += 1
            s.lines.append("    " + t); s.hist.append(c)
            if c.vmem: s.vm.append(tag)
    def vmreset(s): s.vm = []
    def waitvm(s, tag):
        idx = max(i for i, t in enumerate(s.vm) if t == tag)
        n = len(s.vm) - 1 - idx
        assert n <= 63
        s(f"s_waitcnt vmcnt({n})")
    def text(s): return "\n".join(s.lines)
```

```python
NAME = "recurrent_scan__sliding_block_cached__glu_gated_geglu__decode"
HDR = """; Kernarg layout (96 bytes, ptrs only, base s[0:1]):
"""
def wrap(body, grid, block, lds, vgpr, sgpr=102, name=NAME + "_kernel", extra_desc=""):
    acc = (vgpr + 3) // 4 * 4
    return f"""{HDR}; @launch grid=({grid},1,1) block=({block},1,1) lds={lds}
.amdgcn_target "amdgcn-amd-amdhsa--gfx950"
.text
.globl {name}
.p2align 8
.type {name},@function
{name}:
{body}
s_endpgm
.section .rodata,"a"
.p2align 6
.amdhsa_kernel {name}
  .amdhsa_next_free_vgpr {vgpr}
  .amdhsa_next_free_sgpr {sgpr}
  .amdhsa_accum_offset {acc}
  .amdhsa_group_segment_fixed_size 0
  .amdhsa_kernarg_size 96
  .amdhsa_user_sgpr_count 2
  .amdhsa_user_sgpr_kernarg_segment_ptr 1
  .amdhsa_system_sgpr_workgroup_id_x 1
{extra_desc}.end_amdhsa_kernel
"""
```

```python
import sys
from asmlib import *
from asmgen import Gen
QOFF, STOFF, GUOFF, YOFF, OOFF, ZOFF = 0x1000, 0x44000, 0x48000, 0x74000, 0x98000, 0x118000
STAMP = 0x8000000
DPP = "row_mask:0xf bank_mask:0xf"
LOG2E = 0x3fb8aa3b
SPIN = 200000
sW, sX, sIdx, sH, sJ = "s28", "s29", "s30", "s31", "s32"
WS = "s[36:39]"; TS = "s[40:43]"
TAG = ["s46", "s47", "s48", "s49"]

def build(win=8, qwait_after=24, stamps=False):
    g = Gen()
    nst = [0]
    def stamp(k):
        if stamps: g(f"s_memrealtime s[{70+2*k}:{71+2*k}]")
    def dump_stamps(slot, n):
        if not stamps: return
        g("s_waitcnt lgkmcnt(0)")
        g("s_mov_b64 exec, 1")
        g(f"s_lshl_b32 s33, s2, 7"); g(f"s_add_u32 s33, s33, {STAMP + slot*8}")
        g("v_mov_b32 v2, 0")
        for k in range(n):
            g(f"v_mov_b32 v4, s{70+2*k}"); g(f"v_mov_b32 v5, s{71+2*k}")
            g(f"buffer_store_dwordx2 v[4:5], v2, {WS}, s33 offen offset:{8*k}")
            g("s_nop 1")
    def red8(v, op="add"):
        for pat in ("quad_perm:[1,0,3,2]", "quad_perm:[2,3,0,1]", "row_half_mirror"):
            for x in v: g(f"v_{op}_f32_dpp {x}, {x}, {x} {pat} {DPP}")
    def redrows(x, t, op="add"):
        g(f"v_mov_b32 {t}, {x}"); g(f"v_permlane16_swap_b32 {x}, {t}"); g(f"v_{op}_f32 {x}, {x}, {t}")
        g(f"v_mov_b32 {t}, {x}"); g(f"v_permlane32_swap_b32 {x}, {t}"); g(f"v_{op}_f32 {x}, {x}, {t}")
    def rbf(x):
        g(f"v_cvt_pk_bf16_f32 {x}, {x}, {x}"); g(f"v_and_b32 {x}, 0xffff0000, {x}")
    def masks(m0, vl, t0, t1):
        g(f"v_and_b32 {t0}, 1, {vl}"); g(f"v_lshlrev_b32 {t0}, 4, {t0}")
        g(f"v_mov_b32 {t1}, 0xffff"); g(f"v_lshlrev_b32 {t0}, {t0}, {t1}")
        g(f"v_bfe_u32 {t1}, {vl}, 1, 2")
        for i in range(4):
            g(f"v_cmp_eq_u32 vcc, {i}, {t1}"); g(f"v_cndmask_b32 v{m0+i}, 0, {t0}, vcc")
    def tags():
        g("s_waitcnt lgkmcnt(0)")
        g("s_add_u32 s44, s44, 0x00100401"); g("s_add_u32 s45, s45, 1")
        g("s_and_b32 s46, s44, 0x3ff"); g("s_bfe_u32 s47, s44, 0xa000a"); g("s_bfe_u32 s48, s44, 0xa0014"); g("s_and_b32 s49, s45, 0x3ff")
    def puttag(base, vm):
        for r in range(4): g(f"v_bfi_b32 v{base+r}, {vm}, {TAG[r]}, v{base+r}")
    def untag(bases, acc, vm):
        allr = []
        for b in bases:
            for r in range(4):
                g(f"v_xor_b32 v{b+r}, {TAG[r]}, v{b+r}"); allr.append(f"v{b+r}")
        g(f"v_or3_b32 {acc}, {allr[0]}, {allr[1]}, {allr[2]}")
        k = 3
        while k + 1 < len(allr):
            g(f"v_or3_b32 {acc}, {acc}, {allr[k]}, {allr[k+1]}"); k += 2
        g(f"v_or_b32 {acc}, {acc}, {allr[k]}")
        g(f"v_and_b32 {acc}, {vm}, {acc}")
        g(f"v_cmp_ne_u32 vcc, 0, {acc}")
    def spin_guard(cnt, lab):
        g(f"s_add_u32 {cnt}, {cnt}, 1"); g(f"s_cmp_gt_u32 {cnt}, {SPIN}"); g(f"s_cbranch_scc1 {lab}")

    g("s_cmp_ge_u32 s2, 256"); g("s_cbranch_scc1 L_end")
    g("s_load_dwordx16 s[4:19], s[0:1], 0"); g("s_load_dwordx8 s[20:27], s[0:1], 64")
    stamp(0)
    g("v_lshrrev_b32 v1, 6, v0"); g("v_and_b32 v0, 63, v0")
    g(f"v_readfirstlane_b32 {sW}, v1")
    g(f"s_and_b32 {sX}, s2, 7"); g(f"s_lshr_b32 {sIdx}, s2, 3"); g(f"s_and_b32 s33, {sIdx}, 3")
    g(f"s_lshl2_add_u32 {sH}, {sX}, s33"); g(f"s_lshr_b32 {sJ}, s2, 5")
    g("s_mov_b32 s38, 0x10000000"); g("s_mov_b32 s39, 0x20000"); g("s_mov_b32 s43, 0x20000")
    g("v_lshrrev_b32 v1, 4, v0")
    g("v_and_b32 v2, 15, v0")
    g("v_bfe_u32 v3, v0, 3, 1")
    g(f"s_cmp_ge_u32 {sW}, 2"); g("s_cbranch_scc1 L_S")
    g("s_setprio 3")
    g(f"s_cmp_eq_u32 {sW}, 0"); g("s_cbranch_scc0 L_A1p")
    g("s_mov_b32 s50, 8192"); g(f"s_lshl_b32 s51, {sJ}, 6"); g(f"s_lshl_b32 s52, {sH}, 8")
    g(f"s_lshl_b32 s53, {sH}, 13"); g(f"s_lshl_b32 s33, {sJ}, 9"); g("s_add_u32 s53, s53, s33"); g(f"s_add_u32 s53, s53, {QOFF}")
    g("s_mov_b32 s54, 4096"); g("s_mov_b32 s56, 16"); g("s_mov_b32 s42, 0x400000")
    g("v_mov_b32 v4, 0"); g("v_lshlrev_b32 v5, 2, v0"); g("ds_write_b32 v5, v4 offset:256")
    g("s_waitcnt lgkmcnt(0)")
    g("s_mov_b32 s40, s10"); g("s_mov_b32 s41, s11")
    g("s_branch L_tile")
    g.label("L_A1p"); g.flush_hist()
    g(f"s_cmp_ge_u32 {sIdx}, 22"); g("s_cbranch_scc1 L_down")
    g(f"s_cmp_ge_u32 {sIdx}, 11"); g("s_cselect_b32 s33, 1, 0")
    g("s_mul_i32 s34, s33, 11"); g(f"s_sub_u32 s34, {sIdx}, s34")
    g("s_mov_b32 s50, 2752"); g(f"s_lshl_b32 s51, {sX}, 6"); g("s_lshl_b32 s52, s34, 8")
    g("s_lshl_b32 s53, s33, 3"); g(f"s_add_u32 s53, s53, {sX}"); g("s_mul_i32 s53, s53, 11264")
    g("s_lshl_b32 s35, s34, 9"); g("s_add_u32 s53, s53, s35"); g(f"s_add_u32 s53, s53, {GUOFF}")
    g("s_mov_b32 s54, 5632"); g("s_mov_b32 s42, 1409024")
    g("s_cmp_eq_u32 s34, 10"); g("s_cselect_b32 s56, 12, 16")
    g("s_waitcnt lgkmcnt(0)")
    g("s_cmp_eq_u32 s33, 0"); g("s_cselect_b32 s40, s16, s18"); g("s_cselect_b32 s41, s17, s19")
    g.label("L_tile"); g.flush_hist(); g.vmreset()
    g("s_load_dwordx2 s[44:45], s[26:27], 0")
    g("s_mov_b32 s36, s26"); g("s_mov_b32 s37, s27")
    g("v_and_b32 v4, 7, v0"); g("v_lshl_add_u32 v4, v1, 3, v4"); g("v_lshlrev_b32 v4, 5, v4"); g("v_lshl_add_u32 v4, v3, 10, v4")
    g("global_load_dwordx4 v[8:11], v4, s[4:5]", "x"); g("global_load_dwordx4 v[12:15], v4, s[4:5] offset:16", "x")
    g("v_lshlrev_b32 v5, 5, v1"); g("v_lshl_add_u32 v5, v3, 10, v5"); g("s_lshl_b32 s33, s51, 1"); g("v_add_u32 v5, s33, v5")
    g("global_load_dwordx4 v[16:19], v5, s[4:5]", "xt"); g("global_load_dwordx4 v[20:23], v5, s[4:5] offset:16", "xt")
    g("s_lshl_b32 s33, s50, 4"); g("v_mul_lo_u32 v6, v1, s33"); g("v_lshl_add_u32 v6, v2, 4, v6")
    g("v_cmp_gt_u32 vcc, s56, v2"); g("v_mov_b32 v7, 0x7f000000"); g("v_cndmask_b32 v6, v7, v6, vcc")
    g("s_mul_i32 s33, s51, s50"); g("s_add_u32 s33, s33, s52")
    T0 = 64
    for t in range(16):
        g(f"buffer_load_dwordx4 v[{T0+4*t}:{T0+4*t+3}], v6, {TS}, s33 offen nt", f"t{t}")
        if t < 15: g("s_add_u32 s33, s33, s50")
    g("s_barrier")
    stamp(1)
    masks(24, "v0", "v4", "v5")
    g("v_mov_b32 v7, 0x3ff")
    g("v_lshrrev_b32 v6, 5, v0"); g("v_mul_lo_u32 v6, v6, s54"); g("v_lshl_add_u32 v6, v2, 5, v6")
    g("v_and_b32 v4, 1, v1"); g("v_lshl_add_u32 v6, v4, 4, v6")
    tags()
    g(f"s_lshl_b32 s33, {sW}, 2"); g("s_sub_u32 s33, 264, s33"); g("v_mov_b32 v4, s33"); g("ds_write_b32 v4, v7")
    g.waitvm("x")
    for k in range(8):
        g(f"v_lshlrev_b32 v{32+2*k}, 16, v{8+k}"); g(f"v_and_b32 v{33+2*k}, 0xffff0000, v{8+k}")
    g("v_add_f32 v28, v32, v33"); g("v_add_f32 v29, v34, v35")
    for k in range(4, 16, 2):
        g(f"v_add_f32 v28, v28, v{32+k}"); g(f"v_add_f32 v29, v29, v{33+k}")
    g("v_add_f32 v28, v28, v29")
    red8(["v28"]); redrows("v28", "v29")
    g("v_mul_f32 v28, 0x3b000000, v28")
    for k in range(16): g(f"v_sub_f32 v{32+k}, v{32+k}, v28")
    g("v_mul_f32 v30, v32, v32"); g("v_mul_f32 v31, v33, v33")
    for k in range(2, 16, 2):
        g(f"v_fmac_f32 v30, v{32+k}, v{32+k}"); g(f"v_fmac_f32 v31, v{33+k}, v{33+k}")
    g("v_add_f32 v30, v30, v31")
    red8(["v30"]); redrows("v30", "v29")
    g("v_mul_f32 v30, 0x3b000000, v30")
    rbf("v28"); rbf("v30")
    g("v_add_f32 v30, 0x3727c5ac, v30"); rbf("v30")
    g("v_sqrt_f32 v30, v30"); rbf("v30")
    g("v_rcp_f32 v30, v30")
    g.waitvm("xt")
    for k in range(8):
        g(f"v_lshlrev_b32 v{32+2*k}, 16, v{16+k}"); g(f"v_and_b32 v{33+2*k}, 0xffff0000, v{16+k}")
    for k in range(16): g(f"v_sub_f32 v{32+k}, v{32+k}, v28")
    for k in range(8): g(f"v_cvt_pk_bf16_f32 v{16+k}, v{32+2*k}, v{33+2*k}")
    for k in range(8):
        g(f"v_lshlrev_b32 v{32+2*k}, 16, v{16+k}"); g(f"v_and_b32 v{33+2*k}, 0xffff0000, v{16+k}")
    for k in range(16): g(f"v_mul_f32 v{32+k}, v{32+k}, v30")
    for k in range(16): g(f"v_cvt_pk_bf16_f32 v{32+k}, v{32+k}, v{32+k}")
    for t in range(16):
        a = 48 + 4 * (t % 4)
        for i in range(4): g(f"v_and_b32 v{a+i}, v{32+t}, v{24+i}")
        g.waitvm(f"t{t}")
        g(f"v_mfma_f32_16x16x32_bf16 v[8:11], v[{a}:{a+3}], v[{T0+4*t}:{T0+4*t+3}], {'0' if t == 0 else 'v[8:11]'}")
    puttag(8, "v7")
    g(f"buffer_store_dwordx4 v[8:11], v6, {WS}, s53 offen sc1")
    stamp(2)
    g(f"s_cmp_eq_u32 {sW}, 0"); g("s_cbranch_scc0 L_Aexit")
    g(f"s_lshr_b32 s33, {sJ}, 2"); g(f"s_lshl_b32 s34, {sH}, 1"); g("s_add_u32 s33, s33, s34"); g("s_lshl_b32 s33, s33, 12")
    g(f"s_add_u32 s33, s33, {QOFF}")
    g("s_add_u32 s58, s26, s33"); g("s_addc_u32 s59, s27, 0")
    g("v_lshlrev_b32 v4, 4, v0")
    g(f"s_lshr_b32 s60, {sH}, 3"); g(f"s_and_b32 s61, {sH}, 7"); g("s_lshl_b32 s61, s61, 3"); g(f"s_add_u32 s61, s61, {sJ}")
    g("s_lshr_b32 s34, s61, 5"); g("s_lshl_b32 s34, s34, 9"); g("s_lshl_b32 s35, s60, 7"); g("s_add_u32 s34, s34, s35")
    g("s_and_b32 s35, s61, 15"); g("s_lshl_b32 s35, s35, 3"); g("s_add_u32 s34, s34, s35")
    g("s_bfe_u32 s35, s61, 0x10004"); g("s_lshl_b32 s35, s35, 2"); g("s_add_u32 s34, s34, s35")
    g("v_and_b32 v50, 1, v1"); g("v_lshlrev_b32 v50, 1, v50"); g("v_lshrrev_b32 v51, 1, v1"); g("v_add3_u32 v50, v50, v51, s34")
    g("v_lshlrev_b32 v50, 1, v50")
    g("global_load_ushort v52, v50, s[4:5]")
    g("s_mov_b32 s57, 0")
    g.label("L_qsent"); g.flush_hist()
    spin_guard("s57", "L_qgo")
    for p in range(8): g(f"s_load_dword s{62+p}, s[58:59], {p*512 + 508} glc")
    g("s_waitcnt lgkmcnt(0)")
    g("s_xor_b32 s34, s62, s49")
    for p in range(1, 8):
        g(f"s_xor_b32 s35, s{62+p}, s49"); g("s_or_b32 s34, s34, s35")
    g("s_and_b32 s34, s34, 0x3ff"); g("s_cbranch_scc1 L_qsent")
    g.label("L_qgo"); g.flush_hist()
    stamp(3)
    g.label("L_qpoll"); g.flush_hist()
    spin_guard("s57", "L_qdone")
    for i in range(4): g(f"buffer_load_dwordx4 v[{8+4*i}:{11+4*i}], v4, {WS}, s33 offen offset:{i*1024} sc1")
    g("s_waitcnt vmcnt(0)")
    untag([8, 12, 16, 20], "v5", "v7")
    g("s_cbranch_vccnz L_qpoll")
    g.label("L_qdone"); g.flush_hist()
    for r in range(4):
        g(f"v_add_f32 v{8+r}, v{8+r}, v{12+r}"); g(f"v_add_f32 v{16+r}, v{16+r}, v{20+r}")
    for r in range(4): g(f"v_add_f32 v{8+r}, v{8+r}, v{16+r}")
    g("v_permlane32_swap_b32 v8, v9"); g("v_permlane32_swap_b32 v10, v11")
    g("v_add_f32 v8, v8, v9"); g("v_add_f32 v10, v10, v11")
    g("v_cvt_pk_bf16_f32 v8, v8, v10")
    g("v_and_b32 v5, 31, v0"); g("v_lshlrev_b32 v5, 3, v5"); g("v_lshrrev_b32 v6, 5, v0"); g("v_lshl_add_u32 v5, v6, 1, v5")
    g("ds_write_b16 v5, v8"); g("ds_write_b16_d16_hi v5, v8 offset:4")
    g("v_mov_b32 v6, 1"); g("v_mov_b32 v5, 0"); g("ds_write_b32 v5, v6 offset:256")
    stamp(4)
    g("v_lshlrev_b32 v4, 10, v0")
    g("s_lshl_b32 s33, s60, 15"); g("s_lshl_b32 s34, s61, 4"); g("s_add_u32 s33, s33, s34"); g(f"s_add_u32 s33, s33, {YOFF}")
    g("s_lshl_b32 s35, s60, 18"); g("s_add_u32 s35, s35, s34"); g(f"s_add_u32 s35, s35, {ZOFF}")
    g("s_add_u32 s63, s35, 0x10000"); g("s_add_u32 s64, s35, 0x20000"); g("s_add_u32 s65, s35, 0x30000")
    g("s_mov_b32 s57, 0")
    g.label("L_swait"); g.flush_hist()
    spin_guard("s57", "L_sgo")
    g("s_sleep 2")
    g("ds_read_b128 v[8:11], v5 offset:272"); g("s_waitcnt lgkmcnt(0)")
    g("v_and_b32 v8, v8, v9"); g("v_and_b32 v10, v10, v11"); g("v_and_b32 v8, v8, v10")
    g("v_cmp_eq_u32 vcc, 0, v8"); g("s_cbranch_vccnz L_swait")
    g.label("L_sgo"); g.flush_hist()
    stamp(5)
    for r in range(4): g(f"v_mov_b32 v{28+r}, 0")
    g("s_mov_b64 exec, 0x3ffff")
    g.label("L_ypoll"); g.flush_hist()
    spin_guard("s57", "L_ydone")
    g(f"buffer_load_dwordx4 v[28:31], v4, {WS}, s33 offen sc1")
    g("s_waitcnt vmcnt(0)")
    untag([28], "v6", "v7")
    g("s_cbranch_vccnz L_ypoll")
    g.label("L_ydone"); g.flush_hist()
    g("s_mov_b64 exec, -1")
    def red64(b):
        g(f"v_permlane32_swap_b32 v{b}, v{b+1}"); g(f"v_permlane32_swap_b32 v{b+2}, v{b+3}")
        g(f"v_add_f32 v{b}, v{b}, v{b+1}"); g(f"v_add_f32 v{b+2}, v{b+2}, v{b+3}")
        g(f"v_permlane16_swap_b32 v{b}, v{b+2}"); g(f"v_add_f32 v{b}, v{b}, v{b+2}")
        for pat in ("quad_perm:[1,0,3,2]", "quad_perm:[2,3,0,1]", "row_half_mirror", "row_mirror"):
            g(f"v_add_f32_dpp v{b}, v{b}, v{b} {pat} {DPP}")
    g("s_nop 4")
    red64(28)
    rbf("v28")
    g(f"v_mul_f32 v29, 0xbfb8aa3b, v28"); g("v_exp_f32 v29, v29"); g("v_add_f32 v29, 1.0, v29"); g("v_rcp_f32 v29, v29")
    g("v_mul_f32 v28, v28, v29"); rbf("v28")
    g("v_lshlrev_b32 v52, 16, v52")
    stamp(6)
    g.label("L_zpoll"); g.flush_hist()
    spin_guard("s57", "L_zdone")
    for i, so in enumerate(("s35", "s63", "s64", "s65")):
        g(f"buffer_load_dwordx4 v[{8+4*i}:{11+4*i}], v4, {WS}, {so} offen sc1")
    g("s_waitcnt vmcnt(0)")
    untag([8, 12, 16, 20], "v6", "v7")
    g("s_cbranch_vccnz L_zpoll")
    g.label("L_zdone"); g.flush_hist()
    for r in range(4):
        g(f"v_add_f32 v{8+r}, v{8+r}, v{12+r}"); g(f"v_add_f32 v{16+r}, v{16+r}, v{20+r}")
    for r in range(4): g(f"v_add_f32 v{8+r}, v{8+r}, v{16+r}")
    red64(8)
    rbf("v8")
    g("v_mul_f32 v8, v8, v28"); rbf("v8")
    g("v_add_f32 v8, v8, v52"); g("v_cvt_pk_bf16_f32 v8, v8, v8")
    g("s_mov_b32 s34, 0x00010001"); g("s_mov_b32 s35, 0x00010001"); g("s_mov_b64 exec, s[34:35]")
    g("global_store_short v50, v8, s[22:23]")
    stamp(7)
    g("s_cmp_eq_u32 s2, 0"); g("s_cbranch_scc0 L_A0x")
    g("s_mov_b64 exec, 1")
    g("v_mov_b32 v8, s44"); g("v_mov_b32 v9, s45"); g("v_mov_b32 v5, 0")
    g(f"buffer_store_dwordx2 v[8:9], v5, {WS}, 0 offen sc1")
    g.label("L_A0x"); g.flush_hist()
    dump_stamps(0, 8)
    g.label("L_Aexit"); g.flush_hist()
    g("s_endpgm")
    g.label("L_down"); g.flush_hist(); g.vmreset()
    g(f"s_cmp_ge_u32 {sIdx}, 31"); g("s_cbranch_scc0 L_down2")
    g("s_waitcnt lgkmcnt(0)"); g("s_barrier"); g("v_mov_b32 v4, 260"); g("ds_write_b32 v4, v4"); g("s_endpgm")
    g.label("L_down2"); g.flush_hist()
    g(f"s_sub_u32 s33, {sIdx}, 22"); g("s_lshl_b32 s33, s33, 3"); g(f"s_add_u32 s33, s33, {sX}")
    g("s_lshr_b32 s50, s33, 2"); g("s_and_b32 s51, s33, 3")
    g("s_mov_b32 s42, 1409024")
    g("v_lshlrev_b32 v6, 12, v1"); g("v_lshl_add_u32 v6, v2, 4, v6")
    g("s_mul_i32 s33, s50, 81920"); g("s_lshl_b32 s34, s51, 8"); g("s_add_u32 s33, s33, s34")
    g("s_waitcnt lgkmcnt(0)")
    g("s_load_dwordx2 s[44:45], s[26:27], 0")
    g("s_mov_b32 s40, s20"); g("s_mov_b32 s41, s21"); g("s_mov_b32 s36, s26"); g("s_mov_b32 s37, s27")
    W0 = 64
    for i in range(5):
        for r in range(4):
            k = 4 * i + r
            g(f"buffer_load_dwordx4 v[{W0+4*k}:{W0+4*k+3}], v6, {TS}, s33 offen offset:{r*1024} nt")
        if i < 4: g("s_add_u32 s33, s33, 16384")
    g("s_barrier")
    masks(4, "v0", "v8", "v9")
    g("v_mov_b32 v12, 0x3ff")
    g("v_and_b32 v13, 7, v0"); g("v_lshl_add_u32 v13, v13, 1, v3"); g("v_mul_u32_u24 v13, 5632, v13"); g("v_lshl_add_u32 v13, v1, 4, v13")
    g("s_mul_i32 s52, s50, 320"); g(f"s_add_u32 s52, s52, {GUOFF}"); g("s_add_u32 s53, s52, 90112")
    g("s_cmp_eq_u32 s50, 17"); g("s_cselect_b32 s54, 0, 64")
    g("v_lshlrev_b32 v14, 4, v0")
    g("s_lshl_b32 s55, s51, 15"); g("s_lshl_b32 s33, s50, 10"); g("s_add_u32 s55, s55, s33"); g(f"s_add_u32 s55, s55, {YOFF}")
    tags()
    g("v_mov_b32 v15, 260"); g("ds_write_b32 v15, v15")
    g("s_mov_b32 s57, 0")
    g("s_waitcnt vmcnt(0)")
    G0 = 16
    g.label("L_hpoll"); g.flush_hist()
    spin_guard("s57", "L_hdone")
    g("s_sleep 8")
    g("s_mov_b32 s33, s52"); g("s_mov_b32 s34, s53")
    for i in range(5):
        g(f"buffer_load_dwordx4 v[{G0+4*i}:{G0+4*i+3}], v13, {WS}, s33 offen sc1")
        g(f"buffer_load_dwordx4 v[{G0+20+4*i}:{G0+20+4*i+3}], v13, {WS}, s34 offen sc1")
        if i < 4: g("s_add_u32 s33, s33, s54"); g("s_add_u32 s34, s34, s54")
    g("s_waitcnt vmcnt(0)")
    untag([G0 + 4 * i for i in range(10)], "v15", "v12")
    g("s_cbranch_vccnz L_hpoll")
    g.label("L_hdone"); g.flush_hist()
    red8([f"v{G0+k}" for k in range(40)])
    for k in range(0, 40, 2): g(f"v_cvt_pk_bf16_f32 v{G0+k}, v{G0+k}, v{G0+k+1}")
    for k in range(0, 40, 2):
        g(f"v_and_b32 v{G0+k+1}, 0xffff0000, v{G0+k}"); g(f"v_lshlrev_b32 v{G0+k}, 16, v{G0+k}")
    g("s_mov_b32 s33, 0x3d372713")
    C2 = 0xc0135761
    for k0 in range(0, 20, 4):
        ks = range(k0, k0 + 4)
        for k in ks: g(f"v_mul_f32 v{56+k-k0}, v{G0+k}, v{G0+k}")
        for k in ks: g(f"v_fma_f32 v{56+k-k0}, v{56+k-k0}, s33, 1.0")
        for k in ks: g(f"v_mul_f32 v{56+k-k0}, v{56+k-k0}, v{G0+k}")
        for k in ks: g(f"v_mul_f32 v{56+k-k0}, {hex(C2)}, v{56+k-k0}")
        for k in ks: g(f"v_exp_f32 v{56+k-k0}, v{56+k-k0}")
        for k in ks: g(f"v_add_f32 v{56+k-k0}, 1.0, v{56+k-k0}")
        for k in ks: g(f"v_rcp_f32 v{56+k-k0}, v{56+k-k0}")
        for k in ks: g(f"v_mul_f32 v{G0+k}, v{G0+k}, v{56+k-k0}")
        for k in ks: g(f"v_cvt_pk_bf16_f32 v{G0+k}, v{G0+k}, v{G0+k}")
        for k in ks: g(f"v_and_b32 v{G0+k}, 0xffff0000, v{G0+k}")
        for k in ks: g(f"v_mul_f32 v{G0+k}, v{G0+k}, v{G0+20+k}")
        for k in ks: g(f"v_cvt_pk_bf16_f32 v{G0+k}, v{G0+k}, v{G0+k}")
    for k in range(20):
        a = 36 + 4 * (k % 4)
        for i in range(4): g(f"v_and_b32 v{a+i}, v{G0+k}, v{4+i}")
        g(f"v_mfma_f32_16x16x32_bf16 v[8:11], v[{a}:{a+3}], v[{W0+4*k}:{W0+4*k+3}], {'0' if k == 0 else 'v[8:11]'}")
    puttag(8, "v12")
    g(f"buffer_store_dwordx4 v[8:11], v14, {WS}, s55 offen sc1")
    g("s_endpgm")
    g.label("L_S"); g.flush_hist(); g.vmreset()
    g(f"s_sub_u32 {sW}, {sW}, 2")
    g(f"s_lshr_b32 s50, {sJ}, 2"); g(f"s_and_b32 s51, {sJ}, 3")
    g(f"s_lshl_b32 s33, s50, 5"); g(f"s_add_u32 s33, s33, {sH}"); g("s_lshl_b32 s33, s33, 20")
    g(f"s_lshl2_add_u32 s52, s51, {sW}")
    g("s_lshl_b32 s34, s52, 14"); g("s_add_u32 s33, s33, s34"); g(f"s_add_u32 s33, s33, {0xC0000 + 4096}")
    g("v_bfe_u32 v4, v0, 2, 2"); g("v_lshlrev_b32 v4, 8, v4"); g("v_lshl_add_u32 v4, v1, 6, v4")
    g("v_and_b32 v5, 3, v0"); g("v_lshl_add_u32 v4, v5, 4, v4")
    g("v_lshlrev_b32 v6, 4, v0")
    g("s_waitcnt lgkmcnt(0)")
    g("s_load_dwordx2 s[44:45], s[26:27], 0")
    g("s_add_u32 s54, s6, s33"); g("s_addc_u32 s55, s7, 0")
    g("s_add_u32 s56, s54, 8192"); g("s_addc_u32 s57, s55, 0")
    g("s_add_u32 s58, s8, s33"); g("s_addc_u32 s59, s9, 0")
    g("s_add_u32 s60, s58, 8192"); g("s_addc_u32 s61, s59, 0")
    g("s_mov_b32 s36, s26"); g("s_mov_b32 s37, s27")
    g(f"s_lshl_b32 s33, {sH}, 17"); g("s_lshl_b32 s34, s50, 16"); g("s_add_u32 s33, s33, s34")
    g(f"s_lshl_b32 s34, {sW}, 14"); g("s_add_u32 s33, s33, s34"); g("s_lshl_b32 s34, s51, 8"); g("s_add_u32 s33, s33, s34")
    g("s_add_u32 s62, s12, s33"); g("s_addc_u32 s63, s13, 0")
    K0, V0, O0 = 32, 96, 160
    loads = []
    for i in range(16):
        loads.append((f"global_load_dwordx4 v[{K0+4*i}:{K0+4*i+3}], v4, s[{54 if i < 8 else 56}:{55 if i < 8 else 57}] offset:{(i%8)*1024-4096} nt", f"k{i}"))
    for i in range(16):
        loads.append((f"global_load_dwordx4 v[{V0+4*i}:{V0+4*i+3}], v6, s[{58 if i < 8 else 60}:{59 if i < 8 else 61}] offset:{(i%8)*1024-4096} nt", f"v{i}"))
    for r in range(4):
        loads.append((f"global_load_dwordx4 v[{O0+4*r}:{O0+4*r+3}], v7, s[62:63] offset:{r*1024} nt", f"o{r}"))
    nl = [0]
    def issue(n=1):
        for _ in range(n):
            if nl[0] >= len(loads): return
            if nl[0] >= win: g.waitvm(loads[nl[0] - win][1])
            g(*loads[nl[0]]); nl[0] += 1
    g("s_barrier")
    issue(win)
    stamp(1)
    g("v_lshlrev_b32 v7, 12, v1"); g("v_lshl_add_u32 v7, v2, 4, v7")
    masks(8, "v0", "v12", "v13")
    g("v_mov_b32 v12, 0x3ff")
    g("v_lshlrev_b32 v13, 6, v1"); g("v_lshl_add_u32 v13, v5, 4, v13")
    g("v_bfe_u32 v14, v0, 2, 2")
    g("v_mov_b32 v15, 0")
    tags()
    g(f"s_lshl_b32 s33, {sH}, 1"); g("s_add_u32 s33, s33, s50"); g("s_lshl_b32 s33, s33, 4"); g("s_add_u32 s33, s33, s52")
    g(f"s_lshl_b32 s64, s33, 4"); g(f"s_add_u32 s64, s64, {STOFF}")
    g(f"s_lshl_b32 s65, s33, 9"); g(f"s_add_u32 s65, s65, {OOFF}")
    g(f"s_lshl_b32 s66, {sH}, 9"); g(f"s_add_u32 s66, s66, {STOFF}")
    g(f"s_lshl_b32 s67, {sH}, 14"); g("s_lshl_b32 s34, s50, 8"); g("s_add_u32 s67, s67, s34")
    g(f"s_lshl_b32 s34, {sW}, 6"); g("s_add_u32 s67, s67, s34"); g(f"s_add_u32 s67, s67, {OOFF}")
    g("s_add_u32 s68, s67, 4096")
    g(f"s_lshl_b32 s33, {sH}, 1"); g("s_add_u32 s33, s33, s50"); g(f"s_lshl2_add_u32 s33, s33, {sW}"); g("s_lshl_b32 s33, s33, 10")
    g("s_lshl_b32 s69, s51, 18"); g("s_add_u32 s69, s69, s33"); g(f"s_add_u32 s69, s69, {ZOFF}")
    issue(qwait_after - win)
    stamp(2)
    g("s_mov_b32 s35, 0")
    g.label("L_qwait"); g.flush_hist()
    spin_guard("s35", "L_qok")
    g("ds_read_b64 v[16:17], v15 offset:256"); g("ds_read_b128 v[20:23], v13"); g("s_waitcnt lgkmcnt(0)")
    g("v_min_u32 v16, v16, v17")
    g("v_cmp_eq_u32 vcc, 0, v16"); g("s_cbranch_vccnz L_qwait")
    g.label("L_qok"); g.flush_hist()
    stamp(3)
    QB = 176
    for t in range(4):
        g(f"v_cmp_eq_u32 vcc, {t}, v14")
        for i in range(4): g(f"v_cndmask_b32 v{QB+4*t+i}, 0, v{20+i}, vcc")
    g.waitvm("k15")
    D0 = 192
    for t in range(4):
        for G in range(4):
            k = K0 + 4 * (4 * G + t)
            g(f"v_mfma_f32_16x16x32_bf16 v[{D0+4*G}:{D0+4*G+3}], v[{k}:{k+3}], v[{QB+4*t}:{QB+4*t+3}], {'0' if t == 0 else f'v[{D0+4*G}:{D0+4*G+3}]'}")
        if t == 1: issue()
    issue()
    for G in range(4): g(f"v_mov_b32_dpp v{16+G}, v{D0+4*G} quad_perm:[0,0,0,0] {DPP}")
    for r in range(1, 4):
        for G in range(4): g(f"v_add_f32_dpp v{16+G}, v{D0+4*G+r}, v{16+G} quad_perm:[{r},{r},{r},{r}] {DPP}")
    g("v_cvt_pk_bf16_f32 v20, v16, v17"); g("v_cvt_pk_bf16_f32 v21, v18, v19")
    g("v_lshlrev_b32 v16, 16, v20"); g("v_and_b32 v17, 0xffff0000, v20"); g("v_lshlrev_b32 v18, 16, v21"); g("v_and_b32 v19, 0xffff0000, v21")
    for G in range(4): g(f"v_mul_f32 v{16+G}, 0x3db504f3, v{16+G}")
    g("v_cvt_pk_bf16_f32 v20, v16, v17"); g("v_cvt_pk_bf16_f32 v21, v18, v19")
    g("v_lshlrev_b32 v16, 16, v20"); g("v_and_b32 v17, 0xffff0000, v20"); g("v_lshlrev_b32 v18, 16, v21"); g("v_and_b32 v19, 0xffff0000, v21")
    g("v_max3_f32 v24, v16, v17, v18"); g("v_max_f32 v24, v24, v19")
    g(f"v_max_f32_dpp v24, v24, v24 row_ror:4 {DPP}"); g(f"v_max_f32_dpp v24, v24, v24 row_ror:8 {DPP}")
    redrows("v24", "v25", "max")
    issue()
    for G in range(4): g(f"v_sub_f32 v{16+G}, v{16+G}, v24")
    for G in range(4): g(f"v_mul_f32 v{16+G}, {hex(LOG2E)}, v{16+G}")
    for G in range(4): g(f"v_exp_f32 v{16+G}, v{16+G}")
    g("v_add_f32 v25, v16, v17"); g("v_add_f32 v26, v18, v19")
    for G in range(4): g(f"v_cvt_pk_bf16_f32 v{16+G}, v{16+G}, v{16+G}")
    g("v_add_f32 v25, v25, v26")
    g(f"v_add_f32_dpp v25, v25, v25 row_ror:4 {DPP}"); g(f"v_add_f32_dpp v25, v25, v25 row_ror:8 {DPP}")
    redrows("v25", "v26")
    g("v_mov_b32 v26, v24"); g("v_mov_b32 v27, v25")
    puttag(24, "v12")
    g("s_mov_b64 exec, 1")
    g(f"buffer_store_dwordx4 v[24:27], v15, {WS}, s64 offen sc1", "st")
    g("s_mov_b64 exec, -1")
    stamp(4)
    g("v_and_b32 v28, 7, v0"); g("v_lshl_add_u32 v28, v3, 4, v28")
    g("v_lshlrev_b32 v29, 9, v28"); g("v_lshl_add_u32 v29, v1, 4, v29"); g("v_lshlrev_b32 v28, 4, v28")
    g("v_and_b32 v30, 1, v1"); g("v_lshlrev_b32 v30, 4, v30"); g("v_lshl_add_u32 v30, v2, 5, v30")
    for u in range(16):
        G, t = u // 4, u % 4
        a = QB + 4 * (u % 4)
        for i in range(4): g(f"v_and_b32_dpp v{a+i}, v{16+G}, v{8+i} row_newbcast:{4*t} {DPP}")
        issue()
        g.waitvm(f"v{u}")
        g(f"v_mfma_f32_16x16x32_bf16 v[20:23], v[{a}:{a+3}], v[{V0+4*u}:{V0+4*u+3}], {'0' if u == 0 else 'v[20:23]'}")
    assert nl[0] == len(loads)
    puttag(20, "v12")
    g("s_mov_b32 exec_hi, 0")
    g(f"buffer_store_dwordx4 v[20:23], v30, {WS}, s65 offen sc1")
    g("s_mov_b64 exec, -1")
    stamp(5)
    g(f"s_lshl_b32 s33, {sW}, 2"); g("v_mov_b32 v31, s33"); g("v_mov_b32 v16, 1"); g("ds_write_b32 v31, v16 offset:272")
    g.label("L_stpoll"); g.flush_hist()
    spin_guard("s35", "L_stdone")
    g(f"buffer_load_dwordx4 v[32:35], v28, {WS}, s66 offen sc1"); g(f"buffer_load_dwordx4 v[36:39], v28, {WS}, s66 offen offset:128 sc1")
    g(f"buffer_load_dwordx4 v[40:43], v29, {WS}, s67 offen sc1"); g(f"buffer_load_dwordx4 v[44:47], v29, {WS}, s68 offen sc1")
    g("s_waitcnt vmcnt(2)")
    untag([32, 36], "v16", "v12")
    g("s_cbranch_vccnz L_stpoll")
    g.label("L_stdone"); g.flush_hist()
    g("v_max_f32 v48, v32, v36"); red8(["v48"], "max")
    g("v_sub_f32 v32, v32, v48"); g("v_sub_f32 v36, v36, v48")
    g(f"v_mul_f32 v32, {hex(LOG2E)}, v32"); g(f"v_mul_f32 v36, {hex(LOG2E)}, v36")
    g("v_exp_f32 v32, v32"); g("v_exp_f32 v36, v36")
    g("v_mul_f32 v48, v32, v33"); g("v_fmac_f32 v48, v36, v37"); red8(["v48"])
    g("v_rcp_f32 v48, v48")
    g("v_mul_f32 v32, v32, v48"); g("v_mul_f32 v36, v36, v48")
    g("s_branch L_ochk")
    g.label("L_opoll"); g.flush_hist()
    spin_guard("s35", "L_odone")
    g(f"buffer_load_dwordx4 v[40:43], v29, {WS}, s67 offen sc1"); g(f"buffer_load_dwordx4 v[44:47], v29, {WS}, s68 offen sc1")
    g.label("L_ochk"); g.flush_hist()
    g("s_waitcnt vmcnt(0)")
    untag([40, 44], "v16", "v12")
    g("s_cbranch_vccnz L_opoll")
    g.label("L_odone"); g.flush_hist()
    stamp(6)
    for r in range(4): g(f"v_mul_f32 v{40+r}, v{40+r}, v32")
    for r in range(4): g(f"v_fmac_f32 v{40+r}, v{44+r}, v36")
    red8([f"v{40+r}" for r in range(4)])
    for r in range(4): g(f"v_cvt_pk_bf16_f32 v{40+r}, v{40+r}, v{40+r}")
    for r in range(4):
        a = QB + 4 * r
        for i in range(4): g(f"v_and_b32 v{a+i}, v{40+r}, v{8+i}")
        g(f"v_mfma_f32_16x16x32_bf16 v[20:23], v[{a}:{a+3}], v[{O0+4*r}:{O0+4*r+3}], {'0' if r == 0 else 'v[20:23]'}")
    puttag(20, "v12")
    g(f"buffer_store_dwordx4 v[20:23], v6, {WS}, s69 offen sc1")
    stamp(7)
    if stamps:
        g(f"s_cmp_eq_u32 {sW}, 0"); g("s_cbranch_scc0 L_end")
        dump_stamps(8, 8)
    g.label("L_end")
    return wrap(g.text(), 256, 384, 1024, 208, extra_desc="  .amdhsa_float_denorm_mode_32 3\n")

if __name__ == "__main__":
    open("k1.s", "w").write(build())
    open("k1_st.s", "w").write(build(stamps=True))
```
